```python
import torch

def _softmax(x, axis=-1):
    return torch.softmax(x, dim=axis)

def _gelu(x):
    return torch.nn.functional.gelu(x, approximate='tanh')

def _silu(x):
    return torch.nn.functional.silu(x)

def _sigmoid(x):
    return torch.sigmoid(x)

def _layernorm(x, axis=-1, eps=1e-05):
    m = x.mean(dim=axis, keepdim=True)
    v = x.var(dim=axis, keepdim=True, unbiased=False)
    return (x - m) / torch.sqrt(v + eps)

def _scatter_add(tgt, idx, src, axis=0):
    return tgt.clone().index_add_(axis, idx, src)

def _segment_sum(src, seg, n):
    out = torch.zeros((n,) + src.shape[1:], dtype=src.dtype)
    return out.index_add_(0, seg, src)

def _pad(x, pw):
    flat = tuple((v for pair in reversed(pw) for v in pair))
    return torch.nn.functional.pad(x, flat)
kernel_name = 'adaLN_cond__ssm_conv_s4__dense_activation_silu__prompt'

def setup_inputs():

    _w = lambda a: (lambda t: t.to(torch.bfloat16) if t.is_floating_point() else t)(torch.as_tensor(a))

    def _A_setup():
        B, L, D, N = (1, 2048, 576, 128)
        A_re = -(lambda _x: torch.exp(torch.as_tensor(_x)))((lambda *s: torch.randn(*s, dtype=torch.bfloat16) * 3.2)(D, N))
        A_im = torch.pi * (lambda *s: torch.randn(*s, dtype=torch.bfloat16) * 0.05)(D, N)
        B_re = (lambda *s: torch.randn(*s, dtype=torch.bfloat16) * 0.1)(D, N)
        B_im = (lambda *s: torch.randn(*s, dtype=torch.bfloat16) * 0.1)(D, N)
        C_re = (lambda *s: torch.randn(*s, dtype=torch.bfloat16) * 0.1)(D, N)
        C_im = (lambda *s: torch.randn(*s, dtype=torch.bfloat16) * 0.1)(D, N)
        log_dt = (lambda *s: torch.randn(*s, dtype=torch.bfloat16) * 0.05)(D) * 0.5 - 4.0
        Dskip = (lambda *s: torch.randn(*s, dtype=torch.bfloat16) * 0.05)(D)
        return {'u': _w((lambda *s: torch.randn(*s, dtype=torch.bfloat16) * 0.05)(B, L, D)), 'A_re': _w(A_re), 'A_im': _w(A_im), 'B_re': _w(B_re), 'B_im': _w(B_im), 'C_re': _w(C_re), 'C_im': _w(C_im), 'log_dt': _w(log_dt), 'Dskip': _w(Dskip)}
    _A_in = _A_setup()

    def _B_setup():
        B, S, D, F = (1, 2048, 576, 4608)
        return {'x': _w((lambda *s: torch.randn(*s, dtype=torch.bfloat16) * 0.05)(B, S, D)), 'w1': _w((lambda *s: torch.randn(*s, dtype=torch.bfloat16) * 3.2)(D, F) * D ** (-0.5)), 'w2': _w((lambda *s: torch.randn(*s, dtype=torch.bfloat16) * 0.4)(F, D) * F ** (-0.5))}
    _B_in = _B_setup()
    return {'A_u': _A_in['u'], 'A_A_re': _A_in['A_re'], 'A_A_im': _A_in['A_im'], 'A_B_re': _A_in['B_re'], 'A_B_im': _A_in['B_im'], 'A_C_re': _A_in['C_re'], 'A_C_im': _A_in['C_im'], 'A_log_dt': _A_in['log_dt'], 'A_Dskip': _A_in['Dskip'], 'B_x': _B_in['x'], 'B_w1': _B_in['w1'], 'B_w2': _B_in['w2'], 'c': _w((lambda *s: torch.randn(*s, dtype=torch.bfloat16) * 0.2)(1, 576) * 8.0), 'w_mod': _w((lambda *s: torch.randn(*s, dtype=torch.bfloat16) * 0.2)(576, 6 * 576) * 576 ** (-0.5) * 8.0)}

def reference(A_u, A_A_re, A_A_im, A_B_re, A_B_im, A_C_re, A_C_im, A_log_dt, A_Dskip, B_x, B_w1, B_w2, c, w_mod):

    def _A_ref(u, A_re, A_im, B_re, B_im, C_re, C_im, log_dt, Dskip):
        Bsz, L, D = u.shape
        dt = torch.exp(log_dt)[:, None]
        A = A_re + 1j * A_im
        Bc = B_re + 1j * B_im
        Cc = C_re + 1j * C_im
        logdA = dt * A
        dB = dt * Bc
        l = (lambda x, dt: x.to(dt))(torch.arange(L), A_re.dtype)
        P = torch.exp(logdA[:, :, None] * l[None, None, :])
        K = torch.einsum('dn,dnl,dn->dl', Cc, P, dB).real
        L2 = 2 * L
        Kp = _pad(K, ((0, 0), (0, L)))
        up = (lambda x, *d: x.permute(*d))(u, 0, 2, 1)
        up = _pad(up, ((0, 0), (0, 0), (0, L)))
        Kf = (lambda x, axes=(-2, -1): torch.fft.rfft2(x.float(), dim=axes))(Kp[:, None, :], axes=(-2, -1))
        Uf = (lambda x, axes=(-2, -1): torch.fft.rfft2(x.float(), dim=axes))(up[:, :, None, :], axes=(-2, -1))
        Yf = Uf * Kf[None, :, :, :]
        y = (lambda x, s, axes=(-2, -1): torch.fft.irfft2(x, s=s, dim=axes).to(torch.bfloat16))(Yf, (1, L2), axes=(-2, -1))[:, :, 0, :L]
        y = (lambda x, *d: x.permute(*d))(y, 0, 2, 1) + u * Dskip[None, None, :]
        return y

    def _B_ref(x, w1, w2):
        h = torch.einsum('bsd,df->bsf', x, w1)
        h = _silu(h)
        out = torch.einsum('bsf,fd->bsd', h, w2)
        return out
    x = A_u
    mod = (_silu(c) @ w_mod).reshape(c.shape[0], 6, 1, -1)
    sa, ca, ga, sb, cb, gb = (mod[:, 0].clone(), mod[:, 1].clone(), mod[:, 2].clone(), mod[:, 3].clone(), mod[:, 4].clone(), mod[:, 5].clone())
    h = _layernorm(x, axis=-1) * (1 + ca) + sa
    x = x + ga * _A_ref(h, A_A_re, A_A_im, A_B_re, A_B_im, A_C_re, A_C_im, A_log_dt, A_Dskip)
    h = _layernorm(x, axis=-1) * (1 + cb) + sb
    x = x + gb * _B_ref(h, B_w1, B_w2)
    return x
```

```python
import sys, re

NAME = "adaLN_cond__ssm_conv_s4__dense_activation_silu__prompt"
L, D, NST, F = 2048, 576, 128, 4608

def _al(x, a=4096):
    return (x + a - 1) // a * a
WS = {}
_off = 0
def _reg(name, nbytes):
    global _off
    WS[name] = (_off, nbytes)
    _off = _al(_off + nbytes)
_reg("MOD", 6 * D * 4)
_reg("MEAN", L * 4)
_reg("DEN", L * 4)
_reg("XT", D * L * 2)
KCLEN = 2112
_reg("KC", D * 2 * KCLEN * 2)
_reg("W1", D * F * 2)
_reg("W2", D * F * 2)
_reg("X1T", D * L * 2)
_reg("X1", L * D * 2)
_reg("H2", L * D * 2)
_reg("AIMG", L * F * 2)
_reg("PART", 4 * L * D * 4)

LOG2E = 0x3FB8AA3B
INV2PI = 0x3E22F983


class Asm:
    def __init__(self):
        self.l = []
    def __call__(self, s=""):
        for line in s.strip("\n").split("\n"):
            t = line.strip()
            if t.startswith("buffer_"):
                m = re.search(r"offset:(\d+)", t)
                assert not (m and int(m.group(1)) > 4095), "MUBUF offset > 4095: " + t
            self.l.append("    " + t)
    def label(self, n):
        self.l.append(f"{n}:")
    def raw(self, s):
        self.l.append(s)
    def text(self):
        return "\n".join(self.l) + "\n"


def kernel_header(a, name):
    a.raw(f".globl {name}")
    a.raw(".p2align 8")
    a.raw(f".type {name},@function")
    a.raw(f"{name}:")


def kernel_desc(name, vgpr, sgpr, accum=None):
    if accum is None:
        accum = (vgpr + 3) // 4 * 4
    return f""".amdhsa_kernel {name}
  .amdhsa_next_free_vgpr {vgpr}
  .amdhsa_next_free_sgpr {sgpr}
  .amdhsa_accum_offset {accum}
  .amdhsa_group_segment_fixed_size 0
  .amdhsa_kernarg_size 136
  .amdhsa_user_sgpr_count 2
  .amdhsa_user_sgpr_kernarg_segment_ptr 1
  .amdhsa_system_sgpr_workgroup_id_x 1
.end_amdhsa_kernel"""


def srd_from_ptr(a, s, p, off=0, nbytes=0):
    if off:
        a(f"s_add_u32 s{s}, s{p}, {off}")
        a(f"s_addc_u32 s{s+1}, s{p+1}, 0")
    else:
        a(f"s_mov_b32 s{s}, s{p}")
        a(f"s_mov_b32 s{s+1}, s{p+1}")
    a(f"s_mov_b32 s{s+2}, {nbytes}")
    a(f"s_mov_b32 s{s+3}, 0x00020000")


def srd_ws(a, s, pws, region):
    off, n = WS[region]
    srd_from_ptr(a, s, pws, off, n)


def bf16_round_f32(a, vd, vs):
    a(f"v_cvt_pk_bf16_f32 {vd}, {vs}, {vs}")
    a(f"v_lshlrev_b32 {vd}, 16, {vd}")


N_KGEN, N_W1P, N_W2P, N_XT, N_ST, N_MOD = D, 162, 162, 72, 64, 27
R_KGEN = 0
R_W1P = R_KGEN + N_KGEN
R_W2P = R_W1P + N_W1P
R_XT = R_W2P + N_W2P
R_ST = R_XT + N_XT
R_MOD = R_ST + N_ST
N_PREP = R_MOD + N_MOD
PREP_LDS = 36864


def transposer(a, sS, sD, v_src_off, src_stride, v_dst, dst_addr_fn):
    base = 40
    for i in range(8):
        off = i * src_stride
        if off < 4096:
            a(f"buffer_load_dwordx4 v[{base+4*i}:{base+4*i+3}], {v_src_off}, s[{sS}:{sS+3}], 0 offen offset:{off}")
        else:
            a(f"v_add_u32 v30, {off}, {v_src_off}")
            a(f"buffer_load_dwordx4 v[{base+4*i}:{base+4*i+3}], v30, s[{sS}:{sS+3}], 0 offen")
    a("s_mov_b32 s60, 0x05040100")
    a("s_mov_b32 s61, 0x07060302")
    a("s_waitcnt vmcnt(0)")
    tb = 72
    for j in range(8):
        sel = "s60" if (j & 1) == 0 else "s61"
        for i in range(4):
            a(f"v_perm_b32 v{tb+4*j+i}, v{base+4*(2*i+1)+(j>>1)}, v{base+4*(2*i)+(j>>1)}, {sel}")
    for j in range(8):
        dst_addr_fn(j, "v31")
        a(f"buffer_store_dwordx4 v[{tb+4*j}:{tb+4*j+3}], v31, s[{sD}:{sD+3}], 0 offen")


def gen_prep():
    a = Asm()
    name = "prep_kernel"
    kernel_header(a, name)
    a(f"""
    s_cmp_ge_u32 s2, {N_PREP}
    s_cbranch_scc1 L_prep_end
    s_load_dwordx2 s[4:5], s[0:1], 128
    s_cmp_ge_u32 s2, {R_MOD}
    s_cbranch_scc1 L_role_mod
    s_cmp_ge_u32 s2, {R_ST}
    s_cbranch_scc1 L_role_st
    s_cmp_ge_u32 s2, {R_XT}
    s_cbranch_scc1 L_role_xt
    s_cmp_ge_u32 s2, {R_W2P}
    s_cbranch_scc1 L_role_w2
    s_cmp_ge_u32 s2, {R_W1P}
    s_cbranch_scc1 L_role_w1
    s_branch L_role_kgen
    """)

    a.label("L_role_mod")
    a(f"""
    s_load_dwordx2 s[6:7], s[0:1], 96
    s_load_dwordx2 s[8:9], s[0:1], 104
    s_sub_u32 s3, s2, {R_MOD}
    s_waitcnt lgkmcnt(0)
    """)
    srd_from_ptr(a, 12, 6, 0, D * 2)
    srd_from_ptr(a, 16, 8, 0, D * 6 * D * 2)
    srd_ws(a, 20, 4, "MOD")
    a("s_mov_b32 s60, 0x%08x" % LOG2E)
    for r in range(3):
        a(f"""
        v_add_u32 v1, {256*r}, v0
        v_lshlrev_b32 v2, 1, v1
        buffer_load_ushort v3, v2, s[12:15], 0 offen
        s_waitcnt vmcnt(0)
        v_lshlrev_b32 v3, 16, v3
        v_mul_f32 v4, s60, v3
        v_sub_f32 v4, 0, v4
        v_exp_f32 v4, v4
        s_nop 0
        v_add_f32 v4, 1.0, v4
        v_rcp_f32 v4, v4
        s_nop 0
        v_mul_f32 v4, v3, v4
        """)
        bf16_round_f32(a, "v4", "v4")
        a(f"""
        v_lshlrev_b32 v5, 2, v1
        v_cmp_gt_u32 vcc, {D}, v1
        s_and_saveexec_b64 s[24:25], vcc
        ds_write_b32 v5, v4
        s_mov_b64 exec, s[24:25]
        """)
    a(f"""
    s_waitcnt lgkmcnt(0)
    s_barrier
    v_and_b32 v1, 15, v0
    v_lshrrev_b32 v2, 4, v0
    s_lshl_b32 s26, s3, 8
    v_lshlrev_b32 v3, 4, v1
    v_add_u32 v3, s26, v3
    v_mul_u32_u24 v4, {36*6912}, v2
    v_add_u32 v3, v3, v4
    v_mul_u32_u24 v5, 144, v2
    """)
    for i in range(8):
        a(f"v_mov_b32 v{8+i}, 0")
    a("s_mov_b32 s61, 0xffff0000")
    for blk in range(3):
        for i in range(12):
            k = blk * 12 + i
            off = k * 6912
            a(f"v_add_u32 v6, {off}, v3")
            a(f"buffer_load_dwordx4 v[{40+4*i}:{43+4*i}], v6, s[16:19], 0 offen")
        for q in range(3):
            a(f"ds_read_b128 v[{100+4*q}:{103+4*q}], v5 offset:{(blk*12+4*q)*4}")
        a("s_waitcnt lgkmcnt(0)")
        for i in range(12):
            a(f"s_waitcnt vmcnt({11-i})")
            sk = f"v{100+i}"
            for q in range(4):
                a(f"v_lshlrev_b32 v20, 16, v{40+4*i+q}")
                a(f"v_and_b32 v21, s61, v{40+4*i+q}")
                a(f"v_fmac_f32 v{8+2*q}, v20, {sk}")
                a(f"v_fmac_f32 v{9+2*q}, v21, {sk}")
    a("""
    v_lshlrev_b32 v6, 9, v2
    v_lshlrev_b32 v7, 5, v1
    v_add3_u32 v6, v6, v7, 0
    ds_write_b128 v6, v[8:11] offset:4096
    ds_write_b128 v6, v[12:15] offset:4112
    s_waitcnt lgkmcnt(0)
    s_barrier
    v_cmp_gt_u32 vcc, 128, v0
    s_and_saveexec_b64 s[24:25], vcc
    s_cbranch_execz L_prep_end
    v_lshlrev_b32 v6, 2, v0
    v_mov_b32 v8, 0
    """)
    for g in range(16):
        a(f"ds_read_b32 v{40+g}, v6 offset:{4096+g*512}")
    a("s_waitcnt lgkmcnt(0)")
    for g in range(16):
        a(f"v_add_f32 v8, v8, v{40+g}")
    bf16_round_f32(a, "v8", "v8")
    a(f"""
    s_lshl_b32 s26, s3, 9
    v_add_u32 v6, s26, v6
    buffer_store_dword v8, v6, s[20:23], 0 offen
    s_branch L_prep_end
    """)

    a.label("L_role_st")
    a(f"""
    s_load_dwordx2 s[6:7], s[0:1], 0
    s_sub_u32 s3, s2, {R_ST}
    s_waitcnt lgkmcnt(0)
    """)
    srd_from_ptr(a, 12, 6, 0, L * D * 2)
    srd_ws(a, 16, 4, "MEAN")
    srd_ws(a, 20, 4, "DEN")
    a(f"""
    v_lshrrev_b32 v1, 3, v0
    s_lshl_b32 s26, s3, 5
    v_add_u32 v1, s26, v1
    v_and_b32 v2, 7, v0
    v_mul_u32_u24 v3, 1152, v1
    v_lshlrev_b32 v4, 4, v2
    v_add_u32 v3, v3, v4
    """)
    for i in range(9):
        a(f"buffer_load_dwordx4 v[{40+4*i}:{43+4*i}], v3, s[12:15], 0 offen offset:{128*i}")
    a("s_mov_b32 s61, 0xffff0000")
    a("v_mov_b32 v8, 0")
    a("s_waitcnt vmcnt(0)")
    for i in range(36):
        a(f"v_lshlrev_b32 v80, 16, v{40+i}")
        a(f"v_and_b32 v81, s61, v{40+i}")
        a("v_add_f32 v8, v8, v80")
        a("v_add_f32 v8, v8, v81")

    def red8(v):
        for m in (0x041F, 0x081F, 0x101F):
            a(f"ds_swizzle_b32 v9, {v} offset:0x{m:04X}")
            a("s_waitcnt lgkmcnt(0)")
            a(f"v_add_f32 {v}, {v}, v9")
    red8("v8")
    a("s_mov_b32 s62, 0x%08x" % 0x3AE38E39)
    a("v_mul_f32 v8, s62, v8")
    a("v_mov_b32 v10, 0")
    for i in range(36):
        a(f"v_lshlrev_b32 v80, 16, v{40+i}")
        a(f"v_and_b32 v81, s61, v{40+i}")
        a("v_sub_f32 v80, v80, v8")
        a("v_sub_f32 v81, v81, v8")
        a("v_fmac_f32 v10, v80, v80")
        a("v_fmac_f32 v10, v81, v81")
    red8("v10")
    a("v_mul_f32 v10, s62, v10")
    bf16_round_f32(a, "v8", "v8")
    bf16_round_f32(a, "v10", "v10")
    a("s_mov_b32 s63, 0x3727C5AC")
    a("v_add_f32 v10, s63, v10")
    bf16_round_f32(a, "v10", "v10")
    a("v_sqrt_f32 v10, v10")
    a("s_nop 0")
    bf16_round_f32(a, "v10", "v10")
    a("""
    v_lshlrev_b32 v3, 2, v1
    v_cmp_eq_u32 vcc, 0, v2
    s_and_saveexec_b64 s[24:25], vcc
    s_cbranch_execz L_prep_end
    buffer_store_dword v8, v3, s[16:19], 0 offen
    buffer_store_dword v10, v3, s[20:23], 0 offen
    s_branch L_prep_end
    """)

    a.label("L_role_xt")
    a(f"""
    s_load_dwordx2 s[6:7], s[0:1], 0
    s_sub_u32 s3, s2, {R_XT}
    s_waitcnt lgkmcnt(0)
    """)
    srd_from_ptr(a, 12, 6, 0, L * D * 2)
    srd_ws(a, 16, 4, "XT")
    a(f"""
    v_lshrrev_b32 v1, 6, v0
    s_lshl_b32 s26, s3, 2
    v_add_u32 v1, s26, v1
    v_lshrrev_b32 v2, 3, v1
    s_mov_b32 s27, 0x38E38E39
    v_mul_hi_u32 v2, v1, s27
    v_lshrrev_b32 v2, 1, v2
    v_mul_u32_u24 v3, 9, v2
    v_sub_u32 v3, v1, v3
    v_and_b32 v4, 7, v0
    v_bfe_u32 v5, v0, 3, 3
    v_lshl_add_u32 v6, v2, 3, v4
    v_lshl_add_u32 v7, v3, 3, v5
    v_mul_u32_u24 v8, 9216, v6
    v_lshl_add_u32 v8, v7, 4, v8
    v_lshlrev_b32 v9, 15, v7
    v_lshl_add_u32 v9, v6, 4, v9
    """)
    transposer(a, 12, 16, "v8", 1152, None, lambda j, vt: a(f"v_add_u32 {vt}, {j*4096}, v9"))
    a("s_branch L_prep_end")

    def wrole(label, rbase, kern_off, region, ncols, blk_per_tile, stages_per_tile, rows_per_tile, kgroups):
        a.label(label)
        a(f"""
        s_load_dwordx2 s[6:7], s[0:1], {kern_off}
        s_sub_u32 s3, s2, {rbase}
        s_waitcnt lgkmcnt(0)
        """)
        srd_from_ptr(a, 12, 6, 0, D * F * 2)
        srd_ws(a, 16, 4, region)
        magic = (1 << 32) // kgroups + 1
        magic2 = (1 << 32) // blk_per_tile + 1
        a(f"""
        v_lshrrev_b32 v1, 6, v0
        s_lshl_b32 s26, s3, 2
        v_add_u32 v1, s26, v1
        s_mov_b32 s27, {magic}
        v_mul_hi_u32 v2, v1, s27
        v_mul_u32_u24 v3, {kgroups}, v2
        v_sub_u32 v3, v1, v3
        v_and_b32 v4, 7, v0
        v_bfe_u32 v5, v0, 3, 3
        v_lshl_add_u32 v6, v3, 3, v4
        v_lshl_add_u32 v7, v2, 3, v5
        v_mul_u32_u24 v8, {8*ncols*2}, v6
        v_lshl_add_u32 v8, v7, 4, v8
        s_mov_b32 s27, {magic2}
        v_mul_hi_u32 v10, v7, s27
        v_mul_u32_u24 v11, {blk_per_tile}, v10
        v_sub_u32 v11, v7, v11
        v_lshlrev_b32 v11, 3, v11
        v_mul_u32_u24 v12, {stages_per_tile}, v10
        v_add_u32 v12, v12, v3
        v_mul_u32_u24 v12, {rows_per_tile}, v12
        v_add_u32 v12, v12, v11
        v_lshlrev_b32 v12, 7, v12
        v_lshrrev_b32 v13, 1, v11
        v_and_b32 v13, 4, v13
        v_xor_b32 v13, v13, v4
        """)

        def dst(j, vt):
            a(f"v_xor_b32 {vt}, {j>>1}, v13")
            a(f"v_lshl_add_u32 {vt}, {vt}, 4, v12")
            if j:
                a(f"v_add_u32 {vt}, {j*128}, {vt}")
        transposer(a, 12, 16, "v8", ncols * 2, None, dst)
        a("s_branch L_prep_end")
    wrole("L_role_w1", R_W1P, 80, "W1", F, 36, 9, 288, 9)
    wrole("L_role_w2", R_W2P, 88, "W2", D, 18, 72, 144, 72)

    PART_STRIDE = 2064 * 4
    PRM = 4 * PART_STRIDE
    a.label("L_role_kgen")
    a(f"""
    s_load_dwordx4 s[8:11], s[0:1], 8
    s_load_dwordx4 s[12:15], s[0:1], 24
    s_load_dwordx4 s[16:19], s[0:1], 40
    s_load_dwordx2 s[20:21], s[0:1], 56
    s_mov_b32 s3, s2
    s_waitcnt lgkmcnt(0)
    """)
    for i, p in enumerate((8, 10, 12, 14, 16, 18)):
        srd_from_ptr(a, 24 + 4 * i, p, 0, D * NST * 2)
    srd_from_ptr(a, 48, 20, 0, D * 2)
    srd_ws(a, 52, 4, "KC")
    a(f"""
    s_mov_b32 s60, 0x{LOG2E:08x}
    s_mov_b32 s61, 0x{INV2PI:08x}
    v_lshrrev_b32 v1, 6, v0
    v_and_b32 v2, 63, v0
    v_and_b32 v3, 31, v0
    v_lshrrev_b32 v4, 5, v2
    v_lshl_add_u32 v5, v1, 5, v3
    s_lshl_b32 s62, s3, 7
    v_add_u32 v6, s62, v5
    v_lshlrev_b32 v6, 1, v6
    s_lshl_b32 s63, s3, 1
    v_mov_b32 v7, s63
    """)
    for i in range(6):
        a(f"buffer_load_ushort v{10+i}, v6, s[{24+4*i}:{27+4*i}], 0 offen")
    a("""
    buffer_load_ushort v16, v7, s[48:51], 0 offen
    s_waitcnt vmcnt(0)
    """)
    for i in range(7):
        a(f"v_lshlrev_b32 v{10+i}, 16, v{10+i}")
    a("""
    v_mul_f32 v17, s60, v16
    v_exp_f32 v17, v17
    s_nop 0
    """)
    bf16_round_f32(a, "v17", "v17")
    a(f"""
    v_mul_f32 v20, v17, v10
    v_mul_f32 v21, v17, v11
    v_mul_f32 v22, v17, v12
    v_mul_f32 v23, v17, v13
    v_mul_f32 v24, v15, v23
    v_fma_f32 v24, v14, v22, -v24
    v_mul_f32 v25, v15, v22
    v_fma_f32 v25, v14, v23, v25
    v_mul_f32 v20, s60, v20
    v_mul_f32 v21, s61, v21
    v_mov_b32 v22, v24
    v_mov_b32 v23, v25
    v_mul_u32_u24 v26, {PART_STRIDE//4}, v1
    v_lshlrev_b32 v27, 9, v1
    v_lshl_add_u32 v27, v3, 4, v27
    v_add_u32 v27, {PRM}, v27
    ds_write_b128 v27, v[20:23]
    """)
    a(f"""
    v_mov_b32 v28, 0x45000000
    v_mul_f32 v29, v20, v28
    v_exp_f32 v29, v29
    v_mul_f32 v30, v21, v28
    v_fract_f32 v30, v30
    v_sin_f32 v31, v30
    v_cos_f32 v32, v30
    s_nop 0
    v_mul_f32 v33, v23, v31
    v_fma_f32 v33, v22, v32, -v33
    v_mul_f32 v33, v29, v33
    v_cmp_gt_u32 vcc, 32, v2
    v_cndmask_b32 v33, 0, v33, vcc
    """)
    for m in (0x041F, 0x081F, 0x101F, 0x201F, 0x401F):
        a(f"ds_swizzle_b32 v34, v33 offset:0x{m:04X}")
        a("s_waitcnt lgkmcnt(0)")
        a("v_add_f32 v33, v33, v34")
    a(f"""
    s_nop 0
    v_readlane_b32 s64, v33, 32
    s_nop 1
    v_add_f32 v33, s64, v33
    v_lshlrev_b32 v26, 2, v26
    v_add_u32 v34, {2048*4}, v26
    v_cmp_eq_u32 vcc, 0, v2
    s_and_saveexec_b64 s[56:57], vcc
    ds_write_b32 v34, v33
    s_mov_b64 exec, s[56:57]
    v_cvt_f32_u32 v40, v3
    v_mov_b32 v28, 0x42000000
    v_mul_f32 v41, v28, v40
    v_add_f32 v42, 0x44800000, v41
    v_lshlrev_b32 v43, 9, v1
    v_lshl_add_u32 v43, v4, 4, v43
    v_add_u32 v43, {PRM}, v43
    """)
    for i in range(32):
        a(f"v_mov_b32 v{64+i}, 0")
    a("s_waitcnt lgkmcnt(0)")
    a("s_mov_b32 s65, 0")
    a.label("L_kgen_loop")
    a("""
    ds_read_b128 v[44:47], v43
    v_add_u32 v43, 32, v43
    s_waitcnt lgkmcnt(0)
    """)
    for (Lr, o0, o1, isx) in (("v41", 50, 51, True), ("v42", 52, 53, True), ("v40", 54, 55, False)):
        a(f"""
        v_mul_f32 v56, v44, {Lr}
        v_mul_f32 v57, v45, {Lr}
        v_exp_f32 v56, v56
        v_fract_f32 v57, v57
        v_sin_f32 v58, v57
        v_cos_f32 v59, v57
        s_nop 0
        """)
        if isx:
            a(f"""
            v_mul_f32 v60, v47, v58
            v_fma_f32 v60, v46, v59, -v60
            v_mul_f32 v61, v47, v59
            v_fma_f32 v61, v46, v58, v61
            v_mul_f32 v{o0}, v56, v60
            v_mul_f32 v{o1}, v56, v61
            v_sub_f32 v{o1}, 0, v{o1}
            """)
        else:
            a(f"""
            v_mul_f32 v{o0}, v56, v59
            v_mul_f32 v{o1}, v56, v58
            """)
    a("""
    s_nop 1
    v_permlane32_swap_b32 v50, v51
    v_permlane32_swap_b32 v52, v53
    v_permlane32_swap_b32 v54, v55
    s_nop 1
    v_mfma_f32_32x32x2_f32 v[64:79], v50, v54, v[64:79]
    v_mfma_f32_32x32x2_f32 v[80:95], v52, v54, v[80:95]
    v_mfma_f32_32x32x2_f32 v[64:79], v51, v55, v[64:79]
    v_mfma_f32_32x32x2_f32 v[80:95], v53, v55, v[80:95]
    s_add_u32 s65, s65, 1
    s_cmp_lt_u32 s65, 16
    s_cbranch_scc1 L_kgen_loop
    s_nop 15
    s_nop 7
    v_lshlrev_b32 v34, 9, v4
    v_lshl_add_u32 v34, v3, 2, v34
    v_add_u32 v34, v26, v34
    """)
    for t in range(2):
        for r in range(16):
            off = t * 4096 + (8 * (r >> 2) + (r & 3)) * 128
            a(f"ds_write_b32 v34, v{64+16*t+r} offset:{off}")
    a("""
    s_waitcnt lgkmcnt(0)
    s_barrier
    """)
    a(f"""
    s_mul_i32 s66, s3, {2*KCLEN*2}
    v_lshlrev_b32 v35, 4, v0
    v_add_u32 v35, s66, v35
    v_lshlrev_b32 v36, 3, v0
    v_sub_u32 v36, 2047, v36
    """)
    for j in range(8):
        a(f"""
        v_subrev_u32 v37, {j}, v36
        v_cvt_f32_u32 v37, v37
        """)
        bf16_round_f32(a, "v37", "v37")
        a(f"""
        v_cvt_u32_f32 v37, v37
        v_lshlrev_b32 v37, 2, v37
        ds_read_b32 v{44+j}, v37
        ds_read_b32 v{52+j}, v37 offset:{PART_STRIDE}
        ds_read_b32 v{60+j}, v37 offset:{2*PART_STRIDE}
        ds_read_b32 v{68+j}, v37 offset:{3*PART_STRIDE}
        """)
    a("s_waitcnt lgkmcnt(0)")
    for j in range(8):
        a(f"""
        v_add_f32 v{44+j}, v{44+j}, v{52+j}
        v_add_f32 v{60+j}, v{60+j}, v{68+j}
        v_add_f32 v{44+j}, v{44+j}, v{60+j}
        """)
    for j in range(8):
        bf16_round_f32(a, f"v{52+j}", f"v{44+j}")
        a(f"v_sub_f32 v{60+j}, v{44+j}, v{52+j}")
    for q in range(4):
        a(f"v_cvt_pk_bf16_f32 v{76+q}, v{52+2*q}, v{53+2*q}")
        a(f"v_cvt_pk_bf16_f32 v{80+q}, v{60+2*q}, v{61+2*q}")
    a(f"""
    buffer_store_dwordx4 v[76:79], v35, s[52:55], 0 offen
    v_add_u32 v36, {KCLEN*2}, v35
    buffer_store_dwordx4 v[80:83], v36, s[52:55], 0 offen
    v_cmp_gt_u32 vcc, 8, v0
    s_and_saveexec_b64 s[56:57], vcc
    s_cbranch_execz L_prep_end
    v_mov_b32 v76, 0
    v_mov_b32 v77, 0
    v_mov_b32 v78, 0
    v_mov_b32 v79, 0
    v_add_u32 v35, 4096, v35
    buffer_store_dwordx4 v[76:79], v35, s[52:55], 0 offen
    v_add_u32 v35, {KCLEN*2}, v35
    buffer_store_dwordx4 v[76:79], v35, s[52:55], 0 offen
    """)
    a.label("L_prep_end")
    a("s_endpgm")
    return a.text(), kernel_desc(name, 128, 72)


CS = 4160
HB = 16 * CS
CONV_LDS = HB + 128 * 80
M_RANGES = [(0, 12), (12, 24), (24, 40), (40, 64)]


def gen_conv():
    a = Asm()
    name = "conv_kernel"
    kernel_header(a, name)
    a(f"""
    s_cmp_ge_u32 s2, {D}
    s_cbranch_scc1 L_conv_end
    s_load_dwordx2 s[4:5], s[0:1], 128
    s_load_dwordx2 s[6:7], s[0:1], 64
    s_waitcnt lgkmcnt(0)
    """)
    srd_ws(a, 8, 4, "KC")
    srd_ws(a, 12, 4, "XT")
    srd_ws(a, 16, 4, "MEAN")
    srd_ws(a, 20, 4, "DEN")
    srd_ws(a, 24, 4, "MOD")
    srd_from_ptr(a, 28, 6, 0, D * 2)
    srd_ws(a, 32, 4, "X1T")
    a(f"s_mul_i32 s36, s2, {2*KCLEN*2}")
    for r in range(3):
        a(f"""
        v_add_u32 v1, {256*r}, v0
        v_cmp_le_u32 vcc, 260, v1
        v_cndmask_b32 v2, 0, 1, vcc
        v_mul_u32_u24 v3, 260, v2
        v_sub_u32 v3, v1, v3
        v_mul_u32_u24 v4, {KCLEN*2}, v2
        v_lshl_add_u32 v4, v3, 4, v4
        v_add_u32 v4, s36, v4
        v_mul_u32_u24 v5, {8*CS}, v2
        v_lshl_add_u32 v5, v3, 4, v5
        v_cmp_gt_u32 vcc, 520, v1
        s_and_saveexec_b64 s[38:39], vcc
        s_cbranch_execz L_conv_skip{r}
        buffer_load_dwordx4 v[40:43], v4, s[8:11], 0 offen
        buffer_load_dwordx4 v[44:47], v4, s[8:11], 0 offen offset:16
        s_waitcnt vmcnt(0)
        """)
        for c in range(8):
            if c % 4 == 0:
                a(f"ds_write_b128 v5, v[{40+c//2}:{43+c//2}] offset:{c*CS}")
            elif c % 2 == 0:
                for i in range(4):
                    a(f"v_mov_b32 v{50+i}, v{40+c//2+i}")
                a(f"ds_write_b128 v5, v[50:53] offset:{c*CS}")
            else:
                for i in range(4):
                    a(f"v_alignbit_b32 v{50+i}, v{40+(c+1)//2+i}, v{40+(c-1)//2+i}, 16")
                a(f"ds_write_b128 v5, v[50:53] offset:{c*CS}")
        a.label(f"L_conv_skip{r}")
        a("s_mov_b64 exec, s[38:39]")
    a(f"""
    s_lshl_b32 s37, s2, 12
    v_lshlrev_b32 v6, 4, v0
    v_add_u32 v7, s37, v6
    buffer_load_dwordx4 v[60:63], v7, s[12:15], 0 offen
    v_lshlrev_b32 v8, 5, v0
    buffer_load_dwordx4 v[64:67], v8, s[16:19], 0 offen
    buffer_load_dwordx4 v[68:71], v8, s[16:19], 0 offen offset:16
    buffer_load_dwordx4 v[72:75], v8, s[20:23], 0 offen
    buffer_load_dwordx4 v[76:79], v8, s[20:23], 0 offen offset:16
    s_lshl_b32 s40, s2, 2
    v_mov_b32 v9, s40
    buffer_load_dword v80, v9, s[24:27], 0 offen
    buffer_load_dword v81, v9, s[24:27], 0 offen offset:{D*4}
    v_add_u32 v10, {2*D*4}, v9
    buffer_load_dword v82, v10, s[24:27], 0 offen
    s_lshl_b32 s41, s2, 1
    v_mov_b32 v10, s41
    buffer_load_ushort v83, v10, s[28:31], 0 offen
    s_mov_b32 s42, 0xffff0000
    s_waitcnt vmcnt(0)
    v_lshlrev_b32 v83, 16, v83
    v_add_f32 v81, 1.0, v81
    """)
    bf16_round_f32(a, "v81", "v81")
    for e in range(8):
        src = f"v{60+e//2}"
        if e % 2 == 0:
            a(f"v_lshlrev_b32 v{84+e}, 16, {src}")
        else:
            a(f"v_and_b32 v{84+e}, s42, {src}")
        a(f"v_sub_f32 v100, v{84+e}, v{64+e}")
        bf16_round_f32(a, "v100", "v100")
        a(f"""
        v_rcp_f32 v101, v{72+e}
        s_nop 0
        v_mul_f32 v102, v100, v101
        v_fma_f32 v103, -v102, v{72+e}, v100
        v_fma_f32 v102, v103, v101, v102
        """)
        bf16_round_f32(a, "v102", "v102")
        a("v_mul_f32 v102, v102, v81")
        bf16_round_f32(a, "v102", "v102")
        a(f"v_add_f32 v{92+e}, v102, v80")
        bf16_round_f32(a, f"v{92+e}", f"v{92+e}")
    for q in range(4):
        a(f"v_cvt_pk_bf16_f32 v{104+q}, v{92+2*q}, v{93+2*q}")
    a(f"""
    v_lshrrev_b32 v11, 2, v0
    v_mul_u32_u24 v11, 80, v11
    v_and_b32 v12, 3, v0
    v_lshl_add_u32 v11, v12, 4, v11
    v_add_u32 v11, {HB}, v11
    ds_write_b128 v11, v[104:107] offset:{64*80}
    v_mov_b32 v104, 0
    v_mov_b32 v105, 0
    v_mov_b32 v106, 0
    v_mov_b32 v107, 0
    ds_write_b128 v11, v[104:107]
    v_and_b32 v13, 31, v0
    v_bfe_u32 v14, v0, 5, 1
    v_lshrrev_b32 v15, 6, v0
    v_sub_u32 v16, 7, v13
    v_and_b32 v16, 7, v16
    v_mul_u32_u24 v17, {CS}, v16
    v_sub_u32 v18, 2047, v13
    v_lshl_add_u32 v18, v14, 3, v18
    v_sub_u32 v18, v18, v16
    v_lshl_add_u32 v17, v18, 1, v17
    v_subrev_u32 v17, 4032, v17
    v_add_u32 v18, 64, v13
    v_mul_u32_u24 v18, 80, v18
    v_lshl_add_u32 v18, v14, 4, v18
    v_add_u32 v18, {HB - 64*80}, v18
    v_readfirstlane_b32 s43, v15
    s_waitcnt lgkmcnt(0)
    s_barrier
    """)
    for i in range(32):
        a(f"v_mov_b32 v{110+i}, 0")
    for w, (m0, m1) in enumerate(M_RANGES):
        if w:
            a.label(f"L_conv_w{w}")
        if w < 3:
            a(f"s_cmp_lg_u32 s43, {w}")
            a(f"s_cbranch_scc1 L_conv_w{w+1}")

        def reads(m, st):
            n = 0
            for hl in range(2):
                for ks in range(2):
                    off = 4032 + hl * 8 * CS + 32 * ks - 64 * m
                    assert 0 <= off < 65536
                    r0 = 20 + 16 * st + 8 * hl + 4 * ks
                    a(f"ds_read_b128 v[{142+16*st+8*hl+4*ks}:{145+16*st+8*hl+4*ks}], v17 offset:{off}")
                    n += 1
            for t in range(2):
                if t == 0 and m > 31:
                    continue
                for ks in range(2):
                    off = 64 * 80 + t * 32 * 80 + 32 * ks - 80 * m
                    assert off >= 0
                    a(f"ds_read_b128 v[{174+16*st+8*t+4*ks}:{177+16*st+8*t+4*ks}], v18 offset:{off}")
                    n += 1
            return n

        reads(m0, 0)
        for m in range(m0, m1):
            st = (m - m0) & 1
            if m + 1 < m1:
                n = reads(m + 1, st ^ 1)
                a(f"s_waitcnt lgkmcnt({n})")
            else:
                a("s_waitcnt lgkmcnt(0)")
            for t in range(2):
                if t == 0 and m > 31:
                    continue
                for hl in range(2):
                    for ks in range(2):
                        A = 142 + 16 * st + 8 * hl + 4 * ks
                        B = 174 + 16 * st + 8 * t + 4 * ks
                        acc = 110 + 16 * t
                        a(f"v_mfma_f32_32x32x16_bf16 v[{acc}:{acc+15}], v[{A}:{A+3}], v[{B}:{B+3}], v[{acc}:{acc+15}]")
        if w < 3:
            a("s_branch L_conv_epi")
    a.label("L_conv_epi")
    a("""
    s_nop 15
    s_nop 3
    s_barrier
    v_lshlrev_b32 v19, 7, v13
    v_lshl_add_u32 v19, v14, 4, v19
    v_lshl_add_u32 v19, v15, 13, v19
    """)
    for t in range(2):
        for g in range(4):
            a(f"ds_write_b128 v19, v[{110+16*t+4*g}:{113+16*t+4*g}] offset:{t*4096+g*32}")
    a("""
    s_waitcnt lgkmcnt(0)
    s_barrier
    v_lshlrev_b32 v19, 5, v0
    """)
    for w in range(4):
        a(f"ds_read_b128 v[{142+8*w}:{145+8*w}], v19 offset:{w*8192}")
        a(f"ds_read_b128 v[{146+8*w}:{149+8*w}], v19 offset:{w*8192+16}")
    a("s_waitcnt lgkmcnt(0)")
    for e in range(8):
        a(f"v_add_f32 v{142+e}, v{142+e}, v{150+e}")
        a(f"v_add_f32 v{158+e}, v{158+e}, v{166+e}")
        a(f"v_add_f32 v{142+e}, v{142+e}, v{158+e}")
        bf16_round_f32(a, f"v{142+e}", f"v{142+e}")
        a(f"v_mul_f32 v100, v{92+e}, v83")
        bf16_round_f32(a, "v100", "v100")
        a(f"v_add_f32 v100, v{142+e}, v100")
        bf16_round_f32(a, "v100", "v100")
        a("v_mul_f32 v100, v82, v100")
        bf16_round_f32(a, "v100", "v100")
        a(f"v_add_f32 v{142+e}, v{84+e}, v100")
    for q in range(4):
        a(f"v_cvt_pk_bf16_f32 v{104+q}, v{142+2*q}, v{143+2*q}")
    a("buffer_store_dwordx4 v[104:107], v7, s[32:35], 0 offen")
    a.label("L_conv_end")
    a("s_endpgm")
    return a.text(), kernel_desc(name, 208, 48)


LN2_ROW = 1168
LN2_LDS = 32 * LN2_ROW


def gen_ln2():
    a = Asm()
    name = "ln2_kernel"
    kernel_header(a, name)
    a(f"""
    s_cmp_ge_u32 s2, {L//32}
    s_cbranch_scc1 L_ln2_end
    s_load_dwordx2 s[4:5], s[0:1], 128
    s_waitcnt lgkmcnt(0)
    """)
    srd_ws(a, 8, 4, "X1T")
    srd_ws(a, 12, 4, "MOD")
    srd_ws(a, 16, 4, "H2")
    srd_ws(a, 20, 4, "X1")
    a("s_mov_b32 s60, 0x05040100")
    a("s_mov_b32 s61, 0x07060302")
    a("s_lshl_b32 s36, s2, 6")
    for rnd in range(2):
        a(f"""
        v_add_u32 v1, {256*rnd}, v0
        v_lshrrev_b32 v2, 2, v1
        v_and_b32 v3, 3, v1
        v_lshlrev_b32 v4, 15, v2
        v_lshl_add_u32 v4, v3, 4, v4
        v_add_u32 v4, s36, v4
        v_lshlrev_b32 v5, 3, v3
        v_mul_u32_u24 v5, {LN2_ROW}, v5
        v_lshl_add_u32 v5, v2, 4, v5
        v_cmp_gt_u32 vcc, 288, v1
        s_and_saveexec_b64 s[38:39], vcc
        s_cbranch_execz L_ln2_skip{rnd}
        """)
        for i in range(8):
            a(f"v_add_u32 v6, {i*4096}, v4")
            a(f"buffer_load_dwordx4 v[{40+4*i}:{43+4*i}], v6, s[8:11], 0 offen")
        a("s_waitcnt vmcnt(0)")
        for j in range(8):
            sel = "s60" if (j & 1) == 0 else "s61"
            for i in range(4):
                a(f"v_perm_b32 v{72+4*j+i}, v{40+4*(2*i+1)+(j>>1)}, v{40+4*(2*i)+(j>>1)}, {sel}")
        for j in range(8):
            a(f"ds_write_b128 v5, v[{72+4*j}:{75+4*j}] offset:{j*LN2_ROW}")
        a.label(f"L_ln2_skip{rnd}")
        a("s_mov_b64 exec, s[38:39]")
    a(f"""
    s_waitcnt lgkmcnt(0)
    s_barrier
    v_lshrrev_b32 v1, 3, v0
    v_and_b32 v2, 7, v0
    v_mul_u32_u24 v3, {LN2_ROW}, v1
    v_lshl_add_u32 v3, v2, 4, v3
    """)
    for i in range(9):
        a(f"ds_read_b128 v[{40+4*i}:{43+4*i}], v3 offset:{128*i}")
    a("v_lshlrev_b32 v4, 5, v2")
    for i in range(9):
        a(f"v_add_u32 v5, {3*D*4 + 256*i}, v4")
        a(f"buffer_load_dwordx4 v[{80+8*i}:{83+8*i}], v5, s[12:15], 0 offen")
        a(f"buffer_load_dwordx4 v[{84+8*i}:{87+8*i}], v5, s[12:15], 0 offen offset:16")
    a("s_mov_b32 s62, 0xffff0000")
    a("s_mov_b32 s63, 0x3AE38E39")
    a("v_mov_b32 v8, 0")
    a("s_waitcnt lgkmcnt(0)")
    for i in range(36):
        a(f"v_lshlrev_b32 v10, 16, v{40+i}")
        a(f"v_and_b32 v11, s62, v{40+i}")
        a("v_add_f32 v8, v8, v10")
        a("v_add_f32 v8, v8, v11")

    def red8(v):
        for m in (0x041F, 0x081F, 0x101F):
            a(f"ds_swizzle_b32 v9, {v} offset:0x{m:04X}")
            a("s_waitcnt lgkmcnt(0)")
            a(f"v_add_f32 {v}, {v}, v9")
    red8("v8")
    a("v_mul_f32 v8, s63, v8")
    a("v_mov_b32 v12, 0")
    for i in range(36):
        a(f"v_lshlrev_b32 v10, 16, v{40+i}")
        a(f"v_and_b32 v11, s62, v{40+i}")
        a("v_sub_f32 v10, v10, v8")
        a("v_sub_f32 v11, v11, v8")
        a("v_fmac_f32 v12, v10, v10")
        a("v_fmac_f32 v12, v11, v11")
    red8("v12")
    a("v_mul_f32 v12, s63, v12")
    bf16_round_f32(a, "v8", "v8")
    bf16_round_f32(a, "v12", "v12")
    a("s_mov_b32 s64, 0x3727C5AC")
    a("v_add_f32 v12, s64, v12")
    bf16_round_f32(a, "v12", "v12")
    a("v_sqrt_f32 v12, v12")
    a("s_nop 0")
    bf16_round_f32(a, "v12", "v12")
    a("v_rcp_f32 v13, v12")
    for i in range(9):
        a(f"v_add_u32 v5, {4*D*4 + 256*i}, v4")
        a(f"buffer_load_dwordx4 v[{152+8*i}:{155+8*i}], v5, s[12:15], 0 offen")
        a(f"buffer_load_dwordx4 v[{156+8*i}:{159+8*i}], v5, s[12:15], 0 offen offset:16")
    a(f"""
    s_lshl_b32 s37, s2, 5
    v_add_u32 v14, s37, v1
    v_mul_u32_u24 v15, 1152, v14
    v_lshl_add_u32 v15, v2, 4, v15
    v_lshrrev_b32 v16, 7, v14
    v_and_b32 v17, 127, v14
    v_mul_u32_u24 v18, {9*128}, v16
    v_add_u32 v18, v18, v17
    v_lshlrev_b32 v18, 7, v18
    v_lshrrev_b32 v19, 1, v17
    v_and_b32 v19, 7, v19
    v_xor_b32 v19, v19, v2
    s_waitcnt vmcnt(0)
    """)
    for i in range(9):
        for e in range(8):
            src = f"v{40+4*i+e//2}"
            if e % 2 == 0:
                a(f"v_lshlrev_b32 v20, 16, {src}")
            else:
                a(f"v_and_b32 v20, s62, {src}")
            a("v_sub_f32 v20, v20, v8")
            bf16_round_f32(a, "v20", "v20")
            a("""
            v_mul_f32 v21, v20, v13
            v_fma_f32 v22, -v21, v12, v20
            v_fma_f32 v21, v22, v13, v21
            """)
            bf16_round_f32(a, "v21", "v21")
            a(f"v_add_f32 v22, 1.0, v{152+8*i+e}")
            bf16_round_f32(a, "v22", "v22")
            a("v_mul_f32 v21, v21, v22")
            bf16_round_f32(a, "v21", "v21")
            a(f"v_add_f32 v{24+e}, v21, v{80+8*i+e}")
        for q in range(4):
            a(f"v_cvt_pk_bf16_f32 v{32+q}, v{24+2*q}, v{25+2*q}")
        a(f"""
        v_lshl_add_u32 v23, v19, 4, v18
        v_add_u32 v23, {i*128*128}, v23
        buffer_store_dwordx4 v[32:35], v23, s[16:19], 0 offen
        v_add_u32 v23, {128*i}, v15
        buffer_store_dwordx4 v[{40+4*i}:{43+4*i}], v23, s[20:23], 0 offen
        """)
    a.label("L_ln2_end")
    a("s_endpgm")
    return a.text(), kernel_desc(name, 224, 72)


def gen_gemm(which):
    g1 = which == 1
    name = f"gemm{which}_kernel"
    FT = 288 if g1 else 144
    NSTG = 9 if g1 else 18
    WFT, WTT = (9, 4) if g1 else (9, 2)
    STAGE = 16384 + FT * 128
    NPC = (16 + FT // 8) // 1
    NPC = 16 + FT * 128 // 1024
    PPW = (NPC + 3) // 4
    NBUF = 3
    DUMMY = NBUF * STAGE
    LDS = DUMMY + 2048
    a = Asm()
    kernel_header(a, name)
    a(f"""
    s_cmp_ge_u32 s2, 256
    s_cbranch_scc1 L_g{which}_end
    s_load_dwordx2 s[4:5], s[0:1], 128
    s_waitcnt lgkmcnt(0)
    """)
    srd_from_ptr(a, 8, 4, 0, 0x10000000)
    a(f"""
    v_lshrrev_b32 v1, 6, v0
    s_nop 1
    v_readfirstlane_b32 s12, v1
    s_and_b32 s13, s2, 15
    s_lshr_b32 s14, s2, 4
    """)
    if g1:
        tok0 = f"s_mul_i32 s15, s13, {9*16384}\ns_add_u32 s15, s15, {WS['H2'][0]}"
        fea0 = f"s_mul_i32 s16, s14, {9*FT*128}\ns_add_u32 s16, s16, {WS['W1'][0]}"
    else:
        a("s_and_b32 s17, s14, 3\ns_lshr_b32 s18, s14, 2")
        tok0 = f"s_mul_i32 s15, s13, {72*16384}\ns_mul_i32 s19, s18, {18*16384}\ns_add_u32 s15, s15, s19\ns_add_u32 s15, s15, {WS['AIMG'][0]}"
        fea0 = f"s_mul_i32 s16, s17, {72*FT*128}\ns_mul_i32 s19, s18, {18*FT*128}\ns_add_u32 s16, s16, s19\ns_add_u32 s16, s16, {WS['W2'][0]}"
    a(tok0)
    a(fea0)
    a(f"s_mul_i32 s19, s12, {PPW}")
    for j in range(PPW):
        a(f"""
        s_add_u32 s20, s19, {j}
        s_lshl_b32 s21, s20, 10
        s_add_u32 s22, s15, s21
        s_sub_u32 s23, s21, 16384
        s_add_u32 s23, s16, s23
        s_cmp_lt_u32 s20, 16
        s_cselect_b32 s{40+j}, s22, s23
        s_mov_b32 s34, 16384
        s_cselect_b32 s{56+j}, s34, {FT*128}
        s_cmp_lt_u32 s20, {NPC}
        s_cselect_b32 s{72+j}, s21, {DUMMY}
        s_cselect_b32 s{40+j}, s{40+j}, s15
        s_cselect_b32 s{56+j}, s{56+j}, 0
        """)
    a("v_and_b32 v2, 63, v0\nv_lshlrev_b32 v2, 4, v2")

    def dma(buf):
        for j in range(PPW):
            a(f"""
            s_add_u32 m0, s{72+j}, {buf*STAGE}
            s_nop 0
            buffer_load_dwordx4 v2, s[8:11], s{40+j} offen lds
            s_add_u32 s{40+j}, s{40+j}, s{56+j}
            """)
    a(f"""
    v_and_b32 v3, 15, v0
    v_bfe_u32 v4, v0, 4, 2
    v_lshrrev_b32 v5, 1, v3
    v_xor_b32 v6, v4, v5
    v_lshlrev_b32 v6, 4, v6
    v_lshl_add_u32 v6, v3, 7, v6
    """)
    if g1:
        a("s_and_b32 s24, s12, 1\ns_lshr_b32 s25, s12, 1")
        a(f"s_mul_i32 s26, s24, {64*128}\ns_mul_i32 s27, s25, {144*128}\ns_add_u32 s27, s27, 16384")
    else:
        a(f"s_mul_i32 s26, s12, {32*128}\ns_mov_b32 s27, 16384")
    for buf in range(NBUF):
        for ks in range(2):
            r = 10 + 4 * buf + 2 * ks
            a(f"v_xor_b32 v{r}, {64*ks}, v6")
            a(f"v_add_u32 v{r}, {buf*STAGE}, v{r}")
            a(f"v_add_u32 v{r+1}, s27, v{r}")
            a(f"v_add_u32 v{r}, s26, v{r}")
    NACC = WFT * WTT * 4
    for i in range(NACC):
        a(f"v_accvgpr_write_b32 a{i}, 0")
    dma(0)
    dma(1)
    FA, FB = 32, 32 + 2 * WFT * 4
    for st in range(NSTG):
        buf = st % NBUF
        a(f"s_waitcnt vmcnt({PPW if st + 1 < NSTG else 0})")
        a("s_barrier")
        if st + 2 < NSTG:
            dma((st + 2) % NBUF)
        for ks in range(2):
            r = 10 + 4 * buf + 2 * ks
            for tt in range(WTT):
                q = FB + (ks * WTT + tt) * 4
                a(f"ds_read_b128 v[{q}:{q+3}], v{r} offset:{tt*2048}")
            for ft in range(WFT):
                q = FA + (ks * WFT + ft) * 4
                a(f"ds_read_b128 v[{q}:{q+3}], v{r+1} offset:{ft*2048}")
        for ks in range(2):
            left = (WFT + WTT) * (1 - ks)
            for ft in range(WFT):
                if ft == 0:
                    a(f"s_waitcnt lgkmcnt({left + WFT - 1 if False else left})")
                for tt in range(WTT):
                    qa = FA + (ks * WFT + ft) * 4
                    qb = FB + (ks * WTT + tt) * 4
                    c = (ft * WTT + tt) * 4
                    a(f"v_mfma_f32_16x16x32_bf16 a[{c}:{c+3}], v[{qa}:{qa+3}], v[{qb}:{qb+3}], a[{c}:{c+3}]")
    a("s_nop 7\ns_nop 3")
    if g1:
        a(f"""
        s_mov_b32 s28, 0x{LOG2E:08x}
        s_mul_i32 s29, s14, 288
        s_mul_i32 s30, s25, 144
        s_add_u32 s29, s29, s30
        s_lshl_b32 s30, s13, 7
        s_mul_i32 s30, s13, {72*16384}
        s_add_u32 s30, s30, {WS['AIMG'][0]}
        s_lshl_b32 s31, s24, 13
        s_add_u32 s30, s30, s31
        v_lshrrev_b32 v7, 5, v0
        v_and_b32 v7, 1, v7
        v_xor_b32 v7, v7, v5
        v_lshlrev_b32 v7, 4, v7
        v_and_b32 v8, 1, v4
        v_lshlrev_b32 v8, 3, v8
        v_lshl_add_u32 v8, v3, 7, v8
        v_add_u32 v8, s30, v8
        """)
        for ft in range(WFT):
            a(f"""
            s_add_u32 s31, s29, {16*ft}
            s_lshr_b32 s32, s31, 6
            s_lshl_b32 s32, s32, 14
            s_lshr_b32 s33, s31, 3
            s_and_b32 s33, s33, 7
            s_lshl_b32 s33, s33, 4
            v_xor_b32 v9, s33, v7
            v_add3_u32 v9, v9, v8, s32
            """)
            for tt in range(WTT):
                c = (ft * WTT + tt) * 4
                for r in range(4):
                    a(f"v_accvgpr_read_b32 v{24+r}, a{c+r}")
                for r in range(4):
                    bf16_round_f32(a, f"v{24+r}", f"v{24+r}")
                    a(f"""
                    v_mul_f32 v28, s28, v{24+r}
                    v_sub_f32 v28, 0, v28
                    v_exp_f32 v28, v28
                    s_nop 0
                    v_add_f32 v28, 1.0, v28
                    v_rcp_f32 v28, v28
                    s_nop 0
                    v_mul_f32 v{24+r}, v{24+r}, v28
                    """)
                a(f"""
                v_cvt_pk_bf16_f32 v30, v24, v25
                v_cvt_pk_bf16_f32 v31, v26, v27
                v_add_u32 v29, {tt*2048}, v9
                buffer_store_dwordx2 v[30:31], v29, s[8:11], 0 offen
                """)
    else:
        a(f"""
        s_lshl_b32 s29, s18, 11
        s_lshl_b32 s30, s13, 7
        s_add_u32 s29, s29, s30
        s_lshl_b32 s30, s12, 5
        s_add_u32 s29, s29, s30
        s_mul_i32 s29, s29, {D*4}
        s_mul_i32 s30, s17, {144*4}
        s_add_u32 s29, s29, s30
        s_add_u32 s29, s29, {WS['PART'][0]}
        v_mul_u32_u24 v8, {D*4}, v3
        v_lshl_add_u32 v8, v4, 4, v8
        v_add_u32 v8, s29, v8
        """)
        for ft in range(WFT):
            for tt in range(WTT):
                c = (ft * WTT + tt) * 4
                for r in range(4):
                    a(f"v_accvgpr_read_b32 v{24+r}, a{c+r}")
                a(f"""
                v_add_u32 v29, {tt*16*D*4 + ft*64}, v8
                buffer_store_dwordx4 v[24:27], v29, s[8:11], 0 offen
                s_nop 1
                """)
    a.label(f"L_g{which}_end")
    a("s_endpgm")
    nv = FB + 2 * WTT * 4
    acc_off = (nv + 3) // 4 * 4
    return (a.text(), kernel_desc(name, acc_off + NACC, 90, accum=acc_off)), LDS


def gen_reduce():
    a = Asm()
    name = "reduce_kernel"
    kernel_header(a, name)
    a(f"""
    s_cmp_ge_u32 s2, {L*D//8//256}
    s_cbranch_scc1 L_red_end
    s_load_dwordx2 s[4:5], s[0:1], 128
    s_load_dwordx2 s[6:7], s[0:1], 112
    s_waitcnt lgkmcnt(0)
    """)
    srd_ws(a, 8, 4, "PART")
    srd_ws(a, 12, 4, "X1")
    srd_ws(a, 16, 4, "MOD")
    srd_from_ptr(a, 20, 6, 0, L * D * 2)
    a(f"""
    s_lshl_b32 s24, s2, 8
    v_add_u32 v1, s24, v0
    v_lshlrev_b32 v2, 5, v1
    v_lshlrev_b32 v3, 4, v1
    s_mov_b32 s25, {(1 << 32)//72 + 1}
    v_mul_hi_u32 v4, v1, s25
    v_mul_u32_u24 v4, 72, v4
    v_sub_u32 v4, v1, v4
    v_lshlrev_b32 v4, 5, v4
    v_add_u32 v4, {5*D*4}, v4
    """)
    for k in range(4):
        a(f"v_add_u32 v5, {k*L*D*4}, v2")
        a(f"buffer_load_dwordx4 v[{10+8*k}:{13+8*k}], v5, s[8:11], 0 offen")
        a(f"buffer_load_dwordx4 v[{14+8*k}:{17+8*k}], v5, s[8:11], 0 offen offset:16")
    a("""
    buffer_load_dwordx4 v[44:47], v3, s[12:15], 0 offen
    buffer_load_dwordx4 v[48:51], v4, s[16:19], 0 offen
    buffer_load_dwordx4 v[52:55], v4, s[16:19], 0 offen offset:16
    s_mov_b32 s26, 0xffff0000
    s_waitcnt vmcnt(0)
    """)
    for e in range(8):
        a(f"v_add_f32 v{10+e}, v{10+e}, v{18+e}")
        a(f"v_add_f32 v{26+e}, v{26+e}, v{34+e}")
        a(f"v_add_f32 v{10+e}, v{10+e}, v{26+e}")
        bf16_round_f32(a, f"v{10+e}", f"v{10+e}")
        a(f"v_mul_f32 v{10+e}, v{48+e}, v{10+e}")
        bf16_round_f32(a, f"v{10+e}", f"v{10+e}")
        if e % 2 == 0:
            a(f"v_lshlrev_b32 v56, 16, v{44+e//2}")
        else:
            a(f"v_and_b32 v56, s26, v{44+e//2}")
        a(f"v_add_f32 v{10+e}, v56, v{10+e}")
    for q in range(4):
        a(f"v_cvt_pk_bf16_f32 v{60+q}, v{10+2*q}, v{11+2*q}")
    a("buffer_store_dwordx4 v[60:63], v3, s[20:23], 0 offen")
    a.label("L_red_end")
    a("s_endpgm")
    return a.text(), kernel_desc(name, 64, 32)


def build(kernels, launches):
    out = []
    for l in launches:
        out.append(l)
    out.append('.amdgcn_target "amdgcn-amd-amdhsa--gfx950"')
    out.append(".text")
    for text, _ in kernels:
        out.append(text)
    out.append('.section .rodata,"a"')
    for _, desc in kernels:
        out.append(".p2align 6")
        out.append(desc)
    return "\n".join(out) + "\n"


if __name__ == "__main__":
    g1, lds1 = gen_gemm(1)
    g2, lds2 = gen_gemm(2)
    ks = [gen_prep(), gen_conv(), gen_ln2(), g1, g2, gen_reduce()]
    launches = [f"; @launch kernel=prep_kernel grid=({N_PREP},1,1) block=(256,1,1) lds={PREP_LDS}",
                f"; @launch kernel=conv_kernel grid=({D},1,1) block=(256,1,1) lds={CONV_LDS}",
                f"; @launch kernel=ln2_kernel grid=({L//32},1,1) block=(256,1,1) lds={LN2_LDS}",
                f"; @launch kernel=gemm1_kernel grid=(256,1,1) block=(256,1,1) lds={lds1}",
                f"; @launch kernel=gemm2_kernel grid=(256,1,1) block=(256,1,1) lds={lds2}",
                f"; @launch kernel=reduce_kernel grid=({L*D//8//256},1,1) block=(256,1,1) lds=0"]
    s = build(ks, launches)
    open(f"cdna_kernels/{NAME}.s", "w").write(s)
    print({k: (hex(v[0]), v[1]) for k, v in WS.items()})
```
